```python
import torch

def _softmax(x, axis=-1):
    return torch.softmax(x, dim=axis)
def _gelu(x):
    return torch.nn.functional.gelu(x, approximate="tanh")
def _silu(x):
    return torch.nn.functional.silu(x)
def _sigmoid(x):
    return torch.sigmoid(x)
def _layernorm(x, axis=-1, eps=1e-5):
    m = x.mean(dim=axis, keepdim=True)
    v = x.var(dim=axis, keepdim=True, unbiased=False)
    return (x - m) / torch.sqrt(v + eps)
def _scatter_add(tgt, idx, src, axis=0):
    return tgt.clone().index_add_(axis, idx, src)
def _segment_sum(src, seg, n):
    out = torch.zeros((n,) + src.shape[1:], dtype=src.dtype)
    return out.index_add_(0, seg, src)
def _pad(x, pw):
    flat = tuple(v for pair in reversed(pw) for v in pair)
    return torch.nn.functional.pad(x, flat)

kernel_name = 'recurrent_scan__sliding_block_cached__dense_activation_squared_relu__decode'

def setup_inputs():

    _w = (lambda a: (lambda t: t.to(torch.bfloat16) if t.is_floating_point() else t)(torch.as_tensor(a)))
    def _A_setup():
        B, Sq, D = 2, 1, 448
        Hq, Hkv, Sk, Dh = 16, 8, 8192, 256
        assert Hq % Hkv == 0, (Hq, Hkv)
        return {
            "x": _w((lambda *s: torch.randn(*s, dtype=torch.bfloat16) * 0.05)(B, Sq, D)),
            "k_cache": _w((lambda *s: torch.randn(*s, dtype=torch.bfloat16) * 0.8)(B, Hkv, Sk, Dh)),
            "v_cache": _w((lambda *s: torch.randn(*s, dtype=torch.bfloat16) * 0.2)(B, Hkv, Sk, Dh)),
            "wq": _w((lambda *s: torch.randn(*s, dtype=torch.bfloat16) * 0.8)(D, Hq * Dh) * (D ** -0.5)),
            "wo": _w((lambda *s: torch.randn(*s, dtype=torch.bfloat16) * 0.2)(Hq * Dh, D) * ((Hq * Dh) ** -0.5)),
        }
    _A_in = _A_setup()

    def _B_setup():
        B, S, D, F = 2, 1, 448, 1792
        return {
            "x": _w((lambda *s: torch.randn(*s, dtype=torch.bfloat16) * 0.05)(B, S, D)),
            "w1": _w((lambda *s: torch.randn(*s, dtype=torch.bfloat16) * 0.1)(D, F)),
            "b1": _w((lambda *s: torch.randn(*s, dtype=torch.bfloat16) * 0.4)(F)),
            "w2": _w((lambda *s: torch.randn(*s, dtype=torch.bfloat16) * 0.1)(F, D)),
            "b2": _w((lambda *s: torch.randn(*s, dtype=torch.bfloat16) * 6.4)(D)),
        }
    _B_in = _B_setup()

    return {
        "A_x": _A_in["x"],
        "A_k_cache": _A_in["k_cache"],
        "A_v_cache": _A_in["v_cache"],
        "A_wq": _A_in["wq"],
        "A_wo": _A_in["wo"],
        "B_x": _B_in["x"],
        "B_w1": _B_in["w1"],
        "B_b1": _B_in["b1"],
        "B_w2": _B_in["w2"],
        "B_b2": _B_in["b2"],
    }

def reference(A_x, A_k_cache, A_v_cache, A_wq, A_wo, B_x, B_w1, B_b1, B_w2, B_b2):
    def _A_ref(x, k_cache, v_cache, wq, wo):
        B, Sq, D = x.shape
        Hq, Dh = 16, 256
        Hkv, Sk = k_cache.shape[1], k_cache.shape[2]
        W = min(4096, max(256, Sk // 4))
        rep = Hq // Hkv
        q = (lambda x, *d: x.permute(*d))((x @ wq).reshape(B, Sq, Hq, Dh), 0, 2, 1, 3)
        k = (lambda x, n, axis: torch.repeat_interleave(x, n, dim=axis))(k_cache[:, :, Sk - W:, :], rep, axis=1)
        v = (lambda x, n, axis: torch.repeat_interleave(x, n, dim=axis))(v_cache[:, :, Sk - W:, :], rep, axis=1)
        scores = torch.einsum("bhqd,bhkd->bhqk", q, k) * (Dh ** -0.5)
        p = _softmax(scores, axis=-1)
        o = torch.einsum("bhqk,bhkd->bhqd", p, v)
        return (lambda x, *d: x.permute(*d))(o, 0, 2, 1, 3).reshape(B, Sq, Hq * Dh) @ wo

    def _B_ref(x, w1, b1, w2, b2):
        h = torch.einsum("bsd,df->bsf", x, w1) + b1
        zero = torch.zeros_like(h)
        r = torch.where(h > zero, h, zero)
        h = r * r
        out = torch.einsum("bsf,fd->bsd", h, w2) + b2
        return out

    x = A_x
    xn = _layernorm(x, axis=-1)
    s = _A_ref(xn, A_k_cache, A_v_cache, A_wq, A_wo)
    g = _silu(_B_ref(xn, B_w1, B_b1, B_w2, B_b2))
    return x + s * g
```

```python
import sys
NAME = "recurrent_scan__sliding_block_cached__dense_activation_squared_relu__decode"

K_L   = 0x00000
V_L   = 0x10000
WQT   = V_L + 0xC000
T2    = 0x20000
WOT   = K_L
PA    = K_L + 0x4000
Q_L   = 0x24000
XN    = 0x25000
P_L   = 0x25800
MLOC  = 0x25A00
W_L   = 0x25B00
H_L   = 0x25C00
FL    = 0x25E00
LDS_SIZE = 0x25F00
F_X, F_T1, F_T2, F_K, F_V, F_XN, F_P0, F_Q, F_P, F_H = 0, 4, 8, 16, 32, 48, 52, 56, 60, 64
EPOCH = 0
QP  = 0x10000
HP  = 0x30000
MLG = 0x40000
OP  = 0x50000
SP  = 0xD0000
FP  = 0x110000
WS_REC = 0x200000
STAMP_OFF = 0x8000000
CEXP = 0x3DB8AA3B
LOG2E = 0x3FB8AA3B
MAXPOLL = 1 << 17

class G:
    def __init__(s, stamps=False, cap=6, kvpol="nt", wpol="nt", rotmul=5, prefetch=True):
        s.L = []; s.stamps = stamps; s.cap = cap; s.kvpol = kvpol; s.wpol = wpol; s.rotmul = rotmul
        s.nlab = 0; s.prefetch = prefetch
        s.NST = 16
    def A(s, t):
        for line in t.strip("\n").split("\n"):
            s.L.append("  " + line.strip() if not line.strip().endswith(":") else line.strip())
    def lab(s, p="L"):
        s.nlab += 1; return f"{p}_{s.nlab}"
    def stamp(s, k):
        if s.stamps: s.A(f"s_memrealtime s[{64+2*k}:{65+2*k}]")
    def flush_stamps(s, n):
        if not s.stamps: return
        s.A(f"""s_waitcnt lgkmcnt(0)
        s_mov_b64 exec, 1
        s_lshl_b32 s60, s2, 4
        s_add_u32 s60, s60, s3
        s_mul_i32 s60, s60, {s.NST*8}
        s_add_u32 s60, s60, {STAMP_OFF}
        s_add_u32 s62, s30, s60
        s_addc_u32 s63, s31, 0
        v_mov_b32 v4, 0""")
        for k in range(s.NST):
            kk = k if k < n else 0
            s.A(f"v_mov_b32 v6, s{64+2*kk}\nv_mov_b32 v7, s{65+2*kk}\nglobal_store_dwordx2 v4, v[6:7], s[62:63] offset:{8*k}\ns_nop 1")
        s.A("s_waitcnt vmcnt(0)")
    def waitflag(s, f, n, sleep=1, addr=None):
        l = s.lab("W"); d = s.lab("D")
        rd = f"ds_read_b32 v4, v2 offset:{f}" if addr is None else f"ds_read_b32 v4, {addr}"
        s.A(f"""s_mov_b32 s63, 0
        {l}:
        {rd}
        s_add_u32 s63, s63, 1
        s_waitcnt lgkmcnt(0)
        v_readfirstlane_b32 s60, v4
        s_cmp_ge_u32 s60, {n}
        s_cbranch_scc1 {d}
        s_sleep {sleep}
        s_cmp_lt_u32 s63, {MAXPOLL}
        s_cbranch_scc1 {l}
        {d}:""")
    def post(s, f):
        s.A(f"""s_mov_b64 exec, 1
        ds_add_u32 v2, v3 offset:{f}
        s_mov_b64 exec, -1""")
    def red_swap(s, op, v, t, which):
        s.A(f"""v_mov_b32 v{t}, v{v}
        s_nop 1
        v_permlane{which}_swap_b32 v{t}, v{v}
        s_nop 0
        {op} v{v}, v{v}, v{t}""")
    def tile_baddr(s, dst, base_sgpr_or_imm, ct_sgpr):
        s.A(f"""v_lshrrev_b32 v4, 4, v1
        v_bfe_u32 v5, v1, 2, 2
        v_lshl_add_u32 v6, v4, 3, v5
        v_lshlrev_b32 v{dst}, 7, v6
        v_lshrrev_b32 v5, 1, v5
        v_and_b32 v4, 1, v4
        v_lshl_or_b32 v5, v4, 1, v5
        v_xor_b32 v5, {ct_sgpr}, v5
        v_lshl_add_u32 v{dst}, v5, 5, v{dst}
        v_and_b32 v5, 3, v1
        v_lshl_add_u32 v{dst}, v5, 3, v{dst}
        v_add_u32 v{dst}, {base_sgpr_or_imm}, v{dst}""")

    def prologue(s):
        s.A(f"""s_cmp_ge_u32 s2, 256
        s_cbranch_scc1 L_exit
        s_load_dwordx8 s[8:15], s[0:1], 0
        s_load_dwordx2 s[16:17], s[0:1], 32
        s_load_dwordx8 s[20:27], s[0:1], 48
        s_load_dwordx2 s[28:29], s[0:1], 80
        s_load_dwordx2 s[30:31], s[0:1], 96""")
        s.stamp(0)
        s.A(f"""v_lshrrev_b32 v4, 6, v0
        v_and_b32 v1, 63, v0
        v_mov_b32 v2, {FL}
        v_readfirstlane_b32 s3, v4
        v_mov_b32 v3, 1
        s_and_b32 s4, s2, 7
        s_lshr_b32 s5, s2, 3
        s_and_b32 s6, s5, 1
        s_lshr_b32 s7, s5, 1
        s_cmp_ge_u32 s3, 4
        s_cbranch_scc1 L_notloader""")

    def t2_ids(s):
        s.A("""s_mul_i32 s96, s4, 14
        s_add_u32 s96, s96, s5
        s_lshr_b32 s97, s96, 2
        s_and_b32 s98, s96, 3
        s_sub_u32 s99, 31, s5
        s_lshl_b32 s99, s99, 3
        s_add_u32 s99, s99, s4
        s_mul_i32 s100, s99, 9363
        s_lshr_b32 s100, s100, 16
        s_mul_i32 s101, s100, 7
        s_sub_u32 s101, s99, s101""")

    def loader(s):
        A = s.A
        s.t2_ids()
        A(f"""; generic tile chunk swizzle -> v5 = chunk*16 ; v6 = row_l
        v_lshrrev_b32 v6, 3, v1
        v_bfe_u32 v7, v1, 1, 2
        v_bfe_u32 v8, v1, 4, 1
        s_and_b32 s60, s3, 1
        s_lshl_b32 s60, s60, 1
        v_or_b32 v8, s60, v8
        v_xor_b32 v7, v7, v8
        v_and_b32 v8, 1, v1
        v_lshl_or_b32 v7, v7, 1, v8
        v_lshlrev_b32 v5, 4, v7
        s_lshl_b32 s61, s3, 16
        v_lshl_add_u32 v10, v6, 13, v5
        v_add_u32 v10, s61, v10
        v_lshrrev_b32 v7, 5, v1
        v_and_b32 v8, 31, v1
        s_lshl_b32 s61, s3, 1
        v_add_u32 v9, s61, v7
        v_xor_b32 v9, v9, v8
        v_lshlrev_b32 v9, 4, v9
        v_lshl_add_u32 v12, v7, 9, v9
        v_xor_b32 v13, 0x80, v12
        v_add_u32 v9, s60, v7
        v_lshlrev_b32 v9, 1, v9
        v_xor_b32 v9, v9, v8
        v_lshlrev_b32 v9, 4, v9
        v_lshl_add_u32 v14, v7, 9, v9
        v_xor_b32 v15, 0x80, v14
        v_lshlrev_b32 v9, 4, v1
        s_and_b32 s62, s5, 3
        s_mul_i32 s62, s62, {112*8192}
        s_lshl_b32 s63, s4, 10
        s_add_u32 s62, s62, s63
        s_lshr_b32 s63, s5, 2
        s_lshl_b32 s63, s63, 7
        s_add_u32 s62, s62, s63
        s_lshl_b32 s19, s3, 10
        s_waitcnt lgkmcnt(0)
        s_add_u32 s44, s14, s62
        s_addc_u32 s45, s15, 0
        s_mov_b32 s46, {111*8192+128}
        s_mov_b32 s47, 0x20000
        s_cmp_ge_u32 s3, 2
        s_cbranch_scc1 L_ldx
        s_add_u32 m0, s19, {WQT}
        s_nop 0
        buffer_load_dwordx4 v10, s[44:47], 0 offen {s.wpol} lds
        v_add_u32 v10, {32*8192}, v10
        s_add_u32 s18, s19, {WQT+4096}
        s_branch L_ldx2
        L_ldx:
        s_mov_b32 s56, s8
        s_mov_b32 s57, s9
        s_mov_b32 s58, 1792
        s_mov_b32 s59, 0x20000
        s_sub_u32 s60, s19, 2048
        s_add_u32 m0, s60, {XN}
        v_add_u32 v9, s60, v9
        buffer_load_dwordx4 v9, s[56:59], 0 offen lds
        s_add_u32 s18, s19, {WQT}
        L_ldx2:""")
        for t in range(3):
            A(f"""s_add_u32 m0, s18, {t*4096}
            s_nop 0
            buffer_load_dwordx4 v10, s[44:47], 0 offen {s.wpol} lds""")
            if t < 2: A(f"v_add_u32 v10, {32*8192}, v10")
        A(f"""s_mul_i32 s60, s98, {112*3584}
        s_lshl_b32 s61, s97, 7
        s_add_u32 s60, s60, s61
        s_mul_i32 s61, s100, {128*896}
        s_lshl_b32 s62, s101, 7
        s_add_u32 s61, s61, s62
        s_cmp_lt_u32 s99, 98
        s_cselect_b32 s50, {127*896+128}, 0
        s_movk_i32 s62, 896
        s_cmp_lt_u32 s5, 14
        s_cselect_b32 s48, s20, s24
        s_cselect_b32 s49, s21, s25
        s_cselect_b32 s60, s60, s61
        s_cselect_b32 s50, {111*3584+128}, s50
        s_cselect_b32 s61, 3584, s62
        s_add_u32 s48, s48, s60
        s_addc_u32 s49, s49, 0
        s_mov_b32 s51, 0x20000
        s_lshl_b32 s62, s3, 3
        v_add_u32 v11, s62, v6
        v_mul_lo_u32 v11, v11, s61
        s_lshl_b32 s61, s61, 5
        v_add_u32 v11, v11, v5""")
        kv = f"""s_lshl_b32 s60, s6, 25
        s_lshl_b32 s62, s4, 22
        s_add_u32 s60, s60, s62
        s_lshl_b32 s62, s7, 16
        s_add_u32 s60, s60, s62
        s_add_u32 s60, s60, 0x300000
        s_add_u32 s36, s10, s60
        s_addc_u32 s37, s11, 0
        s_mov_b32 s38, 0x10000
        s_mov_b32 s39, 0x20000
        s_add_u32 s40, s12, s60
        s_addc_u32 s41, s13, 0
        s_mov_b32 s42, 0x10000
        s_mov_b32 s43, 0x20000
        s_mul_i32 s18, s5, {s.rotmul*4096}
        s_add_u32 s18, s18, s19
        s_and_b32 s18, s18, 0xffff"""
        wo = f"""s_lshl_b32 s60, s4, 9
        s_and_b32 s62, s5, 3
        s_lshl_b32 s62, s62, 6
        s_add_u32 s60, s60, s62
        s_mul_i32 s60, s60, 896
        s_lshr_b32 s62, s5, 2
        s_lshl_b32 s62, s62, 7
        s_add_u32 s60, s60, s62
        s_add_u32 s52, s16, s60
        s_addc_u32 s53, s17, 0
        s_cmp_lt_u32 s5, 28
        s_cselect_b32 s54, {319*896+128}, 0
        s_mov_b32 s55, 0x20000
        v_bfe_u32 v7, v1, 3, 1
        v_lshrrev_b32 v8, 4, v1
        v_lshl_add_u32 v7, v7, 4, v8
        s_lshl_b32 s62, s3, 2
        v_add_u32 v7, s62, v7
        v_mul_u32_u24 v16, 896, v7
        v_add_u32 v16, v16, v5"""
        cap = s.cap
        ms = {0: F_X, 3: F_T1, 7: F_T2}
        for c in range(4): ms[8+4*c+3] = F_K + 4*c; ms[24+4*c+3] = F_V + 4*c
        barrier_at = max(cap, 4)
        for n in range(4, 44):
            if n == barrier_at:
                A(kv); A("s_barrier"); s.stamp(1)
            if n == 30: A(wo)
            if n >= cap:
                A(f"s_waitcnt vmcnt({cap-1})")
                if n - cap in ms:
                    s.post(ms[n-cap])
                    if n-cap == 3: s.stamp(2)
                    if n-cap == 23: s.stamp(3)
            if n == 36: s.waitflag(F_P0, 4)
            if n == 40:
                s.stamp(4); s.waitflag(F_P, 4); s.stamp(5)
            if n < 8:
                t = n-4
                A(f"""s_add_u32 m0, s19, {T2 + t*4096}
                s_nop 0
                buffer_load_dwordx4 v11, s[48:51], 0 offen {s.wpol} lds""")
                if t < 3: A("v_add_u32 v11, s61, v11")
            elif n < 40:
                isv = n >= 24; t = (n-8) % 16
                A(f"""s_add_u32 m0, s19, {(V_L if isv else K_L) + t*4096}
                s_nop 0
                buffer_load_dwordx4 v{(14 if isv else 12) + (t&1)}, s[{40 if isv else 36}:{43 if isv else 39}], s18 offen {s.kvpol} lds
                s_add_u32 s18, s18, 4096
                s_and_b32 s18, s18, 0xffff""")
            else:
                t = n-40
                A(f"""s_add_u32 m0, s19, {WOT + t*4096}
                s_nop 0
                buffer_load_dwordx4 v16, s[52:55], 0 offen {s.wpol} lds""")
                if t < 3: A(f"v_add_u32 v16, {(32 if t%2==0 else 224)*896}, v16")
        for n in range(44, 44+cap):
            if n - cap in ms:
                A(f"s_waitcnt vmcnt({43-(n-cap)})")
                s.post(ms[n-cap])
        s.stamp(6)
        A("s_waitcnt vmcnt(0)")
        s.stamp(7)
        s.flush_stamps(8)
        A("s_endpgm")

    def common_cx(s):
        s.A(f"""L_notloader:
        s_waitcnt lgkmcnt(0)
        s_load_dword s18, s[30:31], {EPOCH}
        s_mov_b32 s32, s30
        s_mov_b32 s33, s31
        s_mov_b32 s34, {WS_REC}
        s_mov_b32 s35, 0x20000""")
        s.t2_ids()
        s.A(f"""s_cmp_ge_u32 s3, 12
        s_cbranch_scc1 L_xwave""")

    def tag(s):
        s.A("""s_waitcnt lgkmcnt(0)
        s_mul_i32 s18, s18, 0x9E3779B1
        s_add_u32 s18, s18, 0x7F4A7C15""")

    def gather_loop(s, loads, tagregs, extra_ok=None):
        l = s.lab("G"); d = s.lab("GD")
        s.A(f"s_mov_b32 s61, 0\n{l}:")
        for x in loads: s.A(x)
        s.A(f"""s_add_u32 s61, s61, 1
        s_cmp_ge_u32 s61, {MAXPOLL}
        s_waitcnt vmcnt(0)
        s_cbranch_scc1 {d}""")
        s.A(f"v_xor_b32 v4, s18, v{tagregs[0]}")
        for t in tagregs[1:]:
            s.A(f"v_xor_b32 v5, s18, v{t}\nv_or_b32 v4, v4, v5")
        if extra_ok: s.A(extra_ok)
        s.A(f"""v_cmp_ne_u32 vcc, 0, v4
        s_cbranch_vccnz {l}
        {d}:""")

    def cwave(s):
        A = s.A
        A(f"""s_sub_u32 s19, s3, 4
        v_mov_b32 v5, 0
        v_lshlrev_b32 v6, 2, v1
        s_lshl_b32 s60, s19, 8
        s_add_u32 s60, s60, {WQT + 112*128}
        v_add_u32 v7, s60, v6
        ds_write_b32 v7, v5
        v_add_u32 v7, {FL}, v6
        s_cmp_lg_u32 s19, 0
        s_cbranch_scc1 L_c_nz
        ds_write_b32 v7, v5
        L_c_nz:
        s_and_b32 s40, s19, 3
        s_lshr_b32 s41, s19, 2
        s_mov_b32 s42, {T2}
        s_and_b32 s43, s5, 3
        s_cmp_eq_u32 s41, 0
        s_cselect_b32 s42, {WQT}, s42
        s_cselect_b32 s43, s43, s98""")
        s.tile_baddr(20, "s42", "s40")
        A(f"""; A addr v21 = XN + (m&1)*896 + part*224 + g*16
        v_and_b32 v4, 1, v1
        v_mul_u32_u24 v21, 896, v4
        v_lshrrev_b32 v5, 4, v1
        v_lshl_add_u32 v21, v5, 4, v21
        s_mul_i32 s60, s43, 224
        s_add_u32 s60, s60, {XN}
        v_add_u32 v21, s60, v21
        s_cmp_eq_u32 s41, 0
        s_cselect_b32 s60, 13, 8
        v_lshlrev_b32 v22, s60, v4
        v_bfe_u32 v5, v1, 1, 3
        v_lshl_add_u32 v22, v5, 3, v22
        s_lshl_b32 s60, s4, 14
        s_lshl_b32 s61, s43, 11
        s_add_u32 s60, s60, s61
        s_lshr_b32 s61, s5, 2
        s_lshl_b32 s61, s61, 8
        s_add_u32 s60, s60, s61
        s_add_u32 s60, s60, {QP}
        s_lshl_b32 s61, s96, 9
        s_add_u32 s61, s61, {HP}
        s_cmp_eq_u32 s41, 0
        s_cselect_b32 s44, s60, s61
        s_lshl_b32 s60, s40, 6
        s_add_u32 s44, s44, s60""")
        s.tag()
        A("s_barrier")
        s.stamp(1)
        A("""s_cmp_eq_u32 s41, 0
        s_cbranch_scc1 L_p0_go
        s_cmp_ge_u32 s5, 14
        s_cbranch_scc1 L_p0_done
        L_p0_go:""")
        s.waitflag(F_XN, 1)
        for ks in range(4): A(f"ds_read_b128 v[{24+4*ks}:{27+4*ks}], v21 offset:{ks*64}")
        A(f"""s_lshl_b32 s60, s41, 2
        s_add_u32 s60, s60, {FL + F_T1}
        v_mov_b32 v6, s60""")
        s.waitflag(0, 4, addr="v6")
        s.stamp(2)
        for ks in range(4):
            A(f"ds_read_b64_tr_b16 v[{40+4*ks}:{41+4*ks}], v20 offset:{ks*4096}\nds_read_b64_tr_b16 v[{42+4*ks}:{43+4*ks}], v20 offset:{ks*4096+512}")
        for ks in range(4):
            A(f"s_waitcnt lgkmcnt({6-2*ks})")
            A(f"v_mfma_f32_16x16x32_bf16 v[56:59], v[{24+4*ks}:{27+4*ks}], v[{40+4*ks}:{43+4*ks}], {'0' if ks==0 else 'v[56:59]'}")
        A(f"""v_and_b32 v4, 1, v1
        v_cmp_eq_u32 vcc, 0, v4
        s_mov_b64 exec, 1
        s_cmp_eq_u32 s41, 0
        s_cselect_b32 s60, 1, 0
        v_mov_b32 v5, s60
        ds_add_u32 v2, v5 offset:{F_P0}
        s_mov_b64 exec, -1
        v_mov_b32 v9, s18
        s_nop 1
        v_mov_b32_dpp v6, v56 quad_perm:[1,0,3,2] row_mask:0xf bank_mask:0xf
        v_mov_b32_dpp v7, v57 quad_perm:[1,0,3,2] row_mask:0xf bank_mask:0xf
        v_cndmask_b32 v4, v7, v56, vcc
        v_cndmask_b32 v5, v57, v6, vcc
        v_cvt_pk_bf16_f32 v8, v4, v5
        s_mov_b64 exec, 0xffff
        buffer_store_dwordx2 v[8:9], v22, s[32:35], s44 offen sc1
        s_mov_b64 exec, -1
        L_p0_done:""")
        s.stamp(3)
        A(f"""v_lshlrev_b32 v20, 4, v1
        s_lshl_b32 s60, s4, 14
        s_lshl_b32 s61, s6, 13
        s_add_u32 s60, s60, s61
        s_lshl_b32 s61, s19, 10
        s_add_u32 s60, s60, s61
        s_add_u32 s44, s60, {QP}
        v_lshrrev_b32 v4, 1, v1
        s_lshl_b32 s60, s19, 1
        v_xor_b32 v4, s60, v4
        v_lshlrev_b32 v21, 4, v4
        v_and_b32 v4, 1, v1
        v_lshl_add_u32 v21, v4, 3, v21
        s_lshl_b32 s60, s19, 9
        s_add_u32 s60, s60, {Q_L}
        v_add_u32 v21, s60, v21""")
        s.gather_loop(["buffer_load_dwordx4 v[8:11], v20, s[32:35], s44 offen sc1"], [9, 11])
        A(f"""ds_write2_b32 v21, v8, v10 offset0:0 offset1:1
        s_waitcnt lgkmcnt(0)""")
        s.post(F_Q)
        s.stamp(4)
        A(f"""s_cmp_ge_u32 s19, 4
        s_cbranch_scc1 L_qk_done""")
        A(f"""v_and_b32 v5, 15, v1
        v_lshrrev_b32 v6, 4, v1
        v_xor_b32 v7, v5, v6
        s_lshl_b32 s60, s19, 14
        v_lshlrev_b32 v8, 9, v5
        v_add_u32 v8, s60, v8
        v_and_b32 v5, 7, v1
        v_lshlrev_b32 v9, 1, v5
        v_xor_b32 v9, v9, v6
        v_lshlrev_b32 v10, 9, v5
        v_add_u32 v10, {Q_L}, v10""")
        for q in range(4):
            A(f"""v_xor_b32 v4, {4*q}, v7
            v_lshl_add_u32 v{120+q}, v4, 4, v8
            v_xor_b32 v4, {4*q}, v9
            v_lshl_add_u32 v{124+q}, v4, 4, v10""")
        A(f"""s_lshl_b32 s60, s19, 2
        s_add_u32 s60, s60, {FL + F_K}
        v_mov_b32 v6, s60""")
        s.waitflag(0, 4, addr="v6")
        for ks in range(8):
            for tl in range(2):
                r = 16 + (ks*2+tl)*4
                A(f"ds_read_b128 v[{r}:{r+3}], v{120+(ks&3)} offset:{(ks>>2)*256 + tl*8192}")
            if ks == 3: A("s_waitcnt lgkmcnt(0)")
        s.waitflag(F_Q, 8)
        s.stamp(5)
        A("s_waitcnt lgkmcnt(0)")
        for ks in range(8):
            A(f"ds_read_b128 v[{80+4*ks}:{83+4*ks}], v{124+(ks&3)} offset:{(ks>>2)*256}")
        for ks in range(8):
            A(f"s_waitcnt lgkmcnt({7-ks})")
            for tl in range(2):
                r = 16 + (ks*2+tl)*4
                D = 112 + 4*tl
                A(f"v_mfma_f32_16x16x32_bf16 v[{D}:{D+3}], v[{r}:{r+3}], v[{80+4*ks}:{83+4*ks}], {'0' if ks==0 else f'v[{D}:{D+3}]'}")
        A(f"""; P write address v44 = P + s*128 + (n&1)*64 + g*8 ; ML addr v45 = MLOC + (n&1)*16 + s*4
        v_and_b32 v4, 1, v1
        v_lshrrev_b32 v5, 4, v1
        v_lshlrev_b32 v44, 6, v4
        v_lshl_add_u32 v44, v5, 3, v44
        s_lshl_b32 s60, s19, 7
        s_add_u32 s60, s60, {P_L}
        v_add_u32 v44, s60, v44
        s_lshl_b32 s60, s19, 2
        s_add_u32 s60, s60, {MLOC}
        v_lshlrev_b32 v45, 4, v4
        v_add_u32 v45, s60, v45
        s_mov_b32 s45, {CEXP}""")
        for i in range(8): A(f"v_add_f32_dpp v{16+i}, v{112+i}, v{112+i} row_ror:4 row_mask:0xf bank_mask:0xf")
        for i in range(8): A(f"v_add_f32_dpp v{24+i}, v{16+i}, v{16+i} row_ror:2 row_mask:0xf bank_mask:0xf")
        A("""v_max3_f32 v32, v24, v25, v26
        v_max3_f32 v33, v27, v28, v29
        v_max3_f32 v32, v32, v30, v31
        v_max_f32 v32, v32, v33""")
        s.red_swap("v_max_f32", 32, 33, 16)
        s.red_swap("v_max_f32", 32, 33, 32)
        A("v_mul_f32 v34, s45, v32")
        for i in range(8): A(f"v_fma_f32 v{24+i}, v{24+i}, s45, -v34")
        for i in range(8): A(f"v_exp_f32 v{24+i}, v{24+i}")
        A("""s_nop 0
        v_cvt_pk_bf16_f32 v36, v24, v25
        v_cvt_pk_bf16_f32 v37, v26, v27
        v_cvt_pk_bf16_f32 v38, v28, v29
        v_cvt_pk_bf16_f32 v39, v30, v31
        v_add_f32 v24, v24, v25
        v_add_f32 v26, v26, v27
        v_add_f32 v28, v28, v29
        v_add_f32 v30, v30, v31
        v_add_f32 v24, v24, v26
        v_add_f32 v28, v28, v30
        v_add_f32 v35, v24, v28""")
        s.red_swap("v_add_f32", 35, 33, 16)
        s.red_swap("v_add_f32", 35, 33, 32)
        A(f"""s_mov_b32 s60, 0x00030003
        s_mov_b32 s61, 0x00030003
        s_mov_b64 exec, s[60:61]
        ds_write_b64 v44, v[36:37]
        ds_write_b64 v44, v[38:39] offset:32
        s_mov_b64 exec, 3
        ds_write2_b32 v45, v32, v35 offset0:0 offset1:8
        s_mov_b64 exec, -1
        s_waitcnt lgkmcnt(0)""")
        s.post(F_P)
        A("L_qk_done:")
        s.stamp(6)
        A(f"""v_lshrrev_b32 v4, 4, v1
        v_bfe_u32 v5, v1, 2, 2
        v_lshl_add_u32 v6, v4, 3, v5
        v_lshlrev_b32 v20, 9, v6
        v_and_b32 v6, 1, v4
        v_lshl_or_b32 v5, v6, 2, v5
        s_lshl_b32 s60, s19, 1
        v_xor_b32 v5, s60, v5
        v_lshl_add_u32 v20, v5, 5, v20
        v_and_b32 v5, 3, v1
        v_lshl_add_u32 v20, v5, 3, v20
        v_add_u32 v20, {V_L}, v20
        v_xor_b32 v21, 32, v20
        v_and_b32 v5, 1, v1
        v_lshlrev_b32 v22, 6, v5
        v_lshl_add_u32 v22, v4, 4, v22
        v_add_u32 v22, {P_L}, v22
        v_mov_b32 v23, {MLOC}
        s_mov_b32 s45, {CEXP}
        s_lshl_b32 s60, s4, 2
        s_lshr_b32 s61, s19, 1
        s_add_u32 s60, s60, s61
        s_lshl_b32 s60, s60, 5
        s_lshl_b32 s61, s6, 4
        s_add_u32 s60, s60, s61
        s_add_u32 s60, s60, s7
        s_lshl_b32 s60, s60, 9
        s_and_b32 s61, s19, 1
        s_lshl_b32 s61, s61, 8
        s_add_u32 s60, s60, s61
        s_add_u32 s44, s60, {OP}
        v_lshlrev_b32 v12, 4, v1
        s_lshl_b32 s60, s4, 2
        s_and_b32 s61, s5, 3
        s_add_u32 s47, s60, s61
        s_lshl_b32 s60, s47, 14
        s_lshl_b32 s61, s19, 11
        s_add_u32 s60, s60, s61
        s_add_u32 s46, s60, {OP}
        v_lshrrev_b32 v4, 5, v1
        s_lshl_b32 s60, s41, 5
        s_lshl_b32 s61, s40, 2
        s_add_u32 s60, s60, s61
        v_add_u32 v4, s60, v4
        v_lshlrev_b32 v13, 7, v4
        v_bfe_u32 v5, v1, 2, 3
        s_lshl_b32 s61, s40, 1
        v_xor_b32 v5, s61, v5
        v_lshl_add_u32 v13, v5, 4, v13
        v_and_b32 v5, 3, v1
        v_lshl_add_u32 v13, v5, 2, v13
        v_add_u32 v13, {PA}, v13
        v_xor_b32 v14, 16, v13
        v_add_u32 v14, 256, v14
        v_and_b32 v4, 15, v1
        v_lshrrev_b32 v5, 4, v1
        v_lshrrev_b32 v6, 1, v4
        v_xor_b32 v6, v6, v5
        v_lshlrev_b32 v16, 7, v4
        v_lshl_add_u32 v16, v6, 4, v16
        s_lshl_b32 s60, s41, 12
        s_add_u32 s60, s60, {PA}
        v_add_u32 v16, s60, v16
        v_xor_b32 v17, 64, v16
        s_lshl_b32 s60, s41, 7
        s_add_u32 s60, s60, {W_L}
        v_lshlrev_b32 v18, 4, v5
        v_add_u32 v18, s60, v18
        s_lshr_b32 s60, s5, 2
        s_lshl_b32 s60, s60, 2
        s_add_u32 s60, s60, s40
        s_lshl_b32 s60, s60, 1
        s_add_u32 s60, s60, s41
        s_lshl_b32 s60, s60, 12
        s_lshl_b32 s61, s47, 7
        s_add_u32 s60, s60, s61
        s_add_u32 s48, s60, {SP}
        v_lshlrev_b32 v19, 3, v1
        s_mov_b32 s50, 0x05040100
        s_mov_b32 s51, 0x07060302""")
        s.tile_baddr(15, WOT, "s40")
        s.waitflag(F_P, 4)
        A(f"""ds_read_b128 v[56:59], v23
        ds_read_b128 v[60:63], v23 offset:16""")
        for c in range(4): A(f"ds_read_b128 v[{24+4*c}:{27+4*c}], v22 offset:{c*128}")
        A(f"""s_waitcnt lgkmcnt(4)
        v_max3_f32 v4, v56, v57, v58
        v_max3_f32 v5, v60, v61, v62
        v_max_f32 v4, v4, v59
        v_max_f32 v5, v5, v63
        v_mul_f32 v4, s45, v4
        v_mul_f32 v5, s45, v5""")
        for i in range(4): A(f"v_fma_f32 v{56+i}, v{56+i}, s45, -v4\nv_fma_f32 v{60+i}, v{60+i}, s45, -v5")
        for i in range(8): A(f"v_exp_f32 v{56+i}, v{56+i}")
        A("v_mov_b32 v69, s18\nv_mov_b32 v71, s18")
        s.stamp(7)
        for c in range(4):
            s.waitflag(F_V + 4*c, 4)
            if c == 3: s.stamp(8)
            A(f"""ds_read_b64_tr_b16 v[40:41], v20 offset:{c*16384}
            ds_read_b64_tr_b16 v[42:43], v20 offset:{c*16384+2048}
            ds_read_b64_tr_b16 v[44:45], v21 offset:{c*16384}
            ds_read_b64_tr_b16 v[46:47], v21 offset:{c*16384+2048}
            s_waitcnt lgkmcnt({0 if (s.stamps and c==3) else 2})
            v_mfma_f32_16x16x32_bf16 v[48:51], v[{24+4*c}:{27+4*c}], v[40:43], 0
            s_waitcnt lgkmcnt(0)
            v_mfma_f32_16x16x32_bf16 v[52:55], v[{24+4*c}:{27+4*c}], v[44:47], 0
            s_nop 6""")
            op = "v_mul_f32" if c == 0 else "v_fmac_f32"
            A(f"""{op} v64, v{56+c}, v48
            {op} v65, v{60+c}, v49
            {op} v66, v{56+c}, v52
            {op} v67, v{60+c}, v53""")
        A(f"""v_cvt_pk_bf16_f32 v68, v64, v65
        v_cvt_pk_bf16_f32 v70, v66, v67
        s_mov_b64 exec, 0xffff
        buffer_store_dwordx4 v[68:71], v12, s[32:35], s44 offen sc1
        s_mov_b64 exec, -1""")
        s.stamp(9)
        A(f"""s_cmp_ge_u32 s5, 28
        s_cbranch_scc1 L_c_end""")
        s.gather_loop(["buffer_load_dwordx4 v[24:27], v12, s[32:35], s46 offen sc1",
                       "buffer_load_dwordx4 v[28:31], v12, s[32:35], s46 offen offset:1024 sc1"], [25, 27, 29, 31])
        A(f"""v_perm_b32 v32, v26, v24, s50
        v_perm_b32 v33, v26, v24, s51
        v_perm_b32 v34, v30, v28, s50
        v_perm_b32 v35, v30, v28, s51
        ds_write2st64_b32 v13, v32, v33 offset0:0 offset1:8
        ds_write2st64_b32 v14, v34, v35 offset0:0 offset1:8
        s_waitcnt lgkmcnt(0)""")
        s.stamp(10)
        A("s_barrier")
        s.stamp(11)
        if s.stamps: A("s_waitcnt lgkmcnt(0)")
        o = 0
        for ks in range(2):
            for h in range(2):
                a = 24 + o*4; b_ = 40 + o*4
                A(f"""ds_read_b128 v[{a}:{a+3}], v{16+ks} offset:{h*2048}
                ds_read_b64_tr_b16 v[{b_}:{b_+1}], v15 offset:{h*8192+ks*4096}
                ds_read_b64_tr_b16 v[{b_+2}:{b_+3}], v15 offset:{h*8192+ks*4096+512}""")
                o += 1
        A(f"""ds_read_b128 v[64:67], v18
        ds_read_b128 v[68:71], v18 offset:64""")
        o = 0
        for ks in range(2):
            for h in range(2):
                a = 24 + o*4; b_ = 40 + o*4; D = 56 + 4*h
                A(f"""s_waitcnt lgkmcnt({11 - 3*o})
                v_mfma_f32_16x16x32_bf16 v[{D}:{D+3}], v[{a}:{a+3}], v[{b_}:{b_+3}], {'0' if ks==0 else f'v[{D}:{D+3}]'}""")
                o += 1
        A(f"""s_waitcnt lgkmcnt(0)
        v_mov_b32 v9, s18
        s_nop 5
        v_mul_f32 v8, v64, v56
        v_mul_f32 v7, v65, v57
        v_fmac_f32 v8, v66, v58
        v_fmac_f32 v7, v67, v59
        v_fmac_f32 v8, v68, v60
        v_fmac_f32 v7, v69, v61
        v_fmac_f32 v8, v70, v62
        v_fmac_f32 v7, v71, v63
        v_add_f32 v8, v8, v7""")
        s.red_swap("v_add_f32", 8, 7, 16)
        s.red_swap("v_add_f32", 8, 7, 32)
        A(f"""s_mov_b64 exec, 0xffff
        buffer_store_dwordx2 v[8:9], v19, s[32:35], s48 offen sc1
        s_mov_b64 exec, -1""")
        s.stamp(12)
        A("L_c_end:")
        s.flush_stamps(13)
        A("s_endpgm")

    def bf16r(s, v, t=None):
        s.A(f"v_cvt_pk_bf16_f32 v{v}, v{v}, v{v}\nv_lshlrev_b32 v{v}, 16, v{v}")

    def xwave(s):
        A = s.A
        A("L_xwave:")
        s.tag()
        A("""s_cmp_eq_u32 s3, 15
        s_cbranch_scc1 L_x3
        s_cmp_lg_u32 s3, 12
        s_cbranch_scc1 L_x12""")
        A(f"""v_lshrrev_b32 v4, 5, v1
        v_and_b32 v5, 31, v1
        v_mul_u32_u24 v20, 896, v4
        v_lshl_add_u32 v20, v5, 5, v20
        v_add_u32 v20, {XN}, v20
        v_cmp_gt_u32 s[40:41], 28, v5
        s_mov_b32 s42, 0x3B124925
        s_barrier""")
        s.stamp(1)
        s.waitflag(F_X, 4)
        s.stamp(2)
        A(f"""ds_read_b128 v[24:27], v20
        ds_read_b128 v[28:31], v20 offset:16
        s_waitcnt lgkmcnt(0)""")
        for i in range(8):
            A(f"v_lshlrev_b32 v{32+2*i}, 16, v{24+i}\nv_and_b32 v{33+2*i}, 0xffff0000, v{24+i}")
        A("v_add_f32 v6, v32, v33\nv_add_f32 v7, v34, v35")
        for i in range(2, 8): A(f"v_add_f32 v{6+(i&1)}, v{6+(i&1)}, v{32+2*i}\nv_add_f32 v{6+(i&1)}, v{6+(i&1)}, v{33+2*i}")
        def red32(v):
            A(f"v_cndmask_b32 v{v}, 0, v{v}, s[40:41]\ns_nop 1")
            for r in (8, 4, 2, 1): A(f"v_add_f32_dpp v{v}, v{v}, v{v} row_ror:{r} row_mask:0xf bank_mask:0xf\ns_nop 1")
            s.L.pop()
            s.red_swap("v_add_f32", v, 5, 16)
        A("v_add_f32 v6, v6, v7")
        red32(6)
        A("v_mul_f32 v6, s42, v6\nv_mov_b32 v7, 0\nv_mov_b32 v8, 0")
        for i in range(16): A(f"v_sub_f32 v9, v{32+i}, v6\nv_fmac_f32 v{7+(i&1)}, v9, v9")
        A("v_add_f32 v7, v7, v8")
        red32(7)
        A("v_mul_f32 v7, s42, v7")
        s.bf16r(6); s.bf16r(7)
        A("v_add_f32 v7, 0x3727C5AC, v7")
        s.bf16r(7)
        A("v_sqrt_f32 v7, v7\ns_nop 0")
        s.bf16r(7)
        A("v_rcp_f32 v7, v7")
        for i in range(16): A(f"v_sub_f32 v{32+i}, v{32+i}, v6")
        for i in range(8): A(f"v_cvt_pk_bf16_f32 v{24+i}, v{32+2*i}, v{33+2*i}")
        for i in range(8):
            A(f"v_lshlrev_b32 v{32+2*i}, 16, v{24+i}\nv_and_b32 v{33+2*i}, 0xffff0000, v{24+i}")
        for i in range(16): A(f"v_mul_f32 v{32+i}, v{32+i}, v7")
        for i in range(8): A(f"v_cvt_pk_bf16_f32 v{24+i}, v{32+2*i}, v{33+2*i}")
        A(f"""s_mov_b64 exec, s[40:41]
        ds_write_b128 v20, v[24:27]
        ds_write_b128 v20, v[28:31] offset:16
        s_mov_b64 exec, -1
        s_waitcnt lgkmcnt(0)""")
        s.post(F_XN)
        s.stamp(3)
        A(f"""v_and_b32 v4, 1, v1
        v_lshlrev_b32 v21, 4, v4
        v_add_u32 v20, {MLOC}, v21
        s_mov_b32 s45, {CEXP}
        s_lshl_b32 s60, s4, 10
        s_add_u32 s46, s60, {MLG}
        s_lshl_b32 s60, s6, 4
        s_add_u32 s60, s60, s7
        s_lshl_b32 s60, s60, 5
        s_add_u32 s44, s46, s60
        v_lshlrev_b32 v22, 4, v1
        v_lshrrev_b32 v5, 5, v1
        v_lshl_or_b32 v5, v5, 1, v4
        v_lshlrev_b32 v23, 6, v5
        v_bfe_u32 v5, v1, 1, 4
        v_lshl_add_u32 v23, v5, 2, v23
        v_add_u32 v23, {W_L}, v23
        v_mov_b32 v9, s18
        v_mov_b32 v11, s18""")
        s.waitflag(F_P, 4)
        A(f"""ds_read_b128 v[24:27], v20
        ds_read_b128 v[28:31], v20 offset:32
        s_waitcnt lgkmcnt(0)
        v_max3_f32 v8, v24, v25, v26
        v_max_f32 v8, v8, v27
        v_mul_f32 v5, s45, v8""")
        for i in range(4): A(f"v_fma_f32 v{24+i}, v{24+i}, s45, -v5")
        for i in range(4): A(f"v_exp_f32 v{24+i}, v{24+i}")
        A(f"""s_nop 0
        v_mul_f32 v10, v24, v28
        v_fmac_f32 v10, v25, v29
        v_fmac_f32 v10, v26, v30
        v_fmac_f32 v10, v27, v31
        s_mov_b64 exec, 3
        buffer_store_dwordx4 v[8:11], v21, s[32:35], s44 offen sc1
        s_mov_b64 exec, -1""")
        s.stamp(4)
        A(f"""s_cmp_ge_u32 s5, 28
        s_cbranch_scc1 L_x0_end""")
        s.gather_loop(["buffer_load_dwordx4 v[24:27], v22, s[32:35], s46 offen sc1"], [25, 27])
        A("v_mov_b32 v8, v24\ns_nop 1")
        for r in (2, 4, 8): A(f"v_max_f32_dpp v8, v8, v8 row_ror:{r} row_mask:0xf bank_mask:0xf\ns_nop 1")
        s.L.pop()
        s.red_swap("v_max_f32", 8, 5, 16)
        A(f"""v_sub_f32 v8, v24, v8
        v_mul_f32 v8, s45, v8
        v_exp_f32 v8, v8
        s_nop 0
        v_mul_f32 v9, v8, v26
        s_nop 1""")
        for r in (2, 4, 8): A(f"v_add_f32_dpp v9, v9, v9 row_ror:{r} row_mask:0xf bank_mask:0xf\ns_nop 1")
        s.L.pop()
        s.red_swap("v_add_f32", 9, 5, 16)
        A(f"""v_rcp_f32 v9, v9
        s_nop 0
        v_mul_f32 v8, v8, v9
        ds_write_b32 v23, v8
        s_waitcnt lgkmcnt(0)""")
        s.stamp(5)
        A("s_barrier\nL_x0_end:")
        s.flush_stamps(6)
        A("s_endpgm")
        A(f"""L_x12:
        s_barrier
        s_cmp_lt_u32 s5, 14
        s_cbranch_scc1 L_x12_end
        s_cmp_ge_u32 s99, 98
        s_cbranch_scc1 L_x12_end
        s_sub_u32 s40, s3, 13
        s_lshl_b32 s41, s100, 1
        s_add_u32 s41, s41, s40
        v_and_b32 v5, 31, v1
        v_lshlrev_b32 v20, 2, v5
        s_lshl_b32 s60, s41, 7
        v_add_u32 v6, s60, v20
        global_load_dword v40, v6, s[22:23]
        s_lshl_b32 s60, s41, 11
        s_add_u32 s44, s60, {HP}
        v_lshlrev_b32 v21, 3, v1
        v_lshrrev_b32 v4, 5, v1
        v_lshl_add_u32 v20, v4, 8, v20
        s_lshl_b32 s60, s40, 7
        s_add_u32 s60, s60, {H_L}
        v_add_u32 v20, s60, v20
        v_and_b32 v4, 1, v1
        v_lshrrev_b32 v5, 4, v1
        v_lshlrev_b32 v22, 8, v4
        v_lshl_add_u32 v22, v5, 4, v22
        v_add_u32 v22, {H_L}, v22
        s_lshl_b32 s42, s40, 1
        s_lshl_b32 s60, s101, 2
        s_add_u32 s60, s60, s42
        s_lshl_b32 s60, s60, 12
        s_lshl_b32 s61, s100, 7
        s_add_u32 s60, s60, s61
        s_add_u32 s46, s60, {FP}
        s_add_u32 s47, s46, 4096""")
        s.tile_baddr(23, T2, "s42")
        A("v_xor_b32 v19, 32, v23")
        s.waitflag(F_T1, 4, sleep=4)
        s.stamp(1)
        s.gather_loop([f"buffer_load_dwordx2 v[{24+2*p}:{25+2*p}], v21, s[32:35], s44 offen offset:{512*p} sc1" for p in range(4)], [25, 27, 29, 31])
        s.stamp(2)
        A("v_lshlrev_b32 v6, 16, v24\nv_and_b32 v7, 0xffff0000, v24")
        for p in range(1, 4):
            A(f"v_lshlrev_b32 v8, 16, v{24+2*p}\nv_and_b32 v9, 0xffff0000, v{24+2*p}\nv_add_f32 v6, v6, v8\nv_add_f32 v7, v7, v9")
        A(f"""v_cvt_pk_bf16_f32 v6, v6, v7
        v_and_b32 v7, 0xffff0000, v6
        v_lshlrev_b32 v6, 16, v6
        v_lshlrev_b32 v8, 16, v40
        v_and_b32 v9, 0xffff0000, v40
        v_add_f32 v6, v6, v8
        v_add_f32 v7, v7, v9
        v_cvt_pk_bf16_f32 v6, v6, v7
        v_and_b32 v7, 0xffff0000, v6
        v_lshlrev_b32 v6, 16, v6
        v_max_f32 v6, 0, v6
        v_max_f32 v7, 0, v7
        v_mul_f32 v6, v6, v6
        v_mul_f32 v7, v7, v7
        v_cvt_pk_bf16_f32 v6, v6, v7
        ds_write_b32 v20, v6
        s_waitcnt lgkmcnt(0)""")
        s.post(F_H)
        s.waitflag(F_T2, 4)
        for ks in range(4):
            for tl in range(2):
                b_ = 48 + (ks*2+tl)*4
                A(f"ds_read_b64_tr_b16 v[{b_}:{b_+1}], v{23 if tl==0 else 19} offset:{ks*4096}\nds_read_b64_tr_b16 v[{b_+2}:{b_+3}], v{23 if tl==0 else 19} offset:{ks*4096+512}")
            if ks == 1: A("s_waitcnt lgkmcnt(0)")
        s.waitflag(F_H, 2)
        for ks in range(4): A(f"ds_read_b128 v[{24+4*ks}:{27+4*ks}], v22 offset:{ks*64}")
        for ks in range(4):
            A(f"s_waitcnt lgkmcnt({3-ks})")
            for tl in range(2):
                b_ = 48 + (ks*2+tl)*4; D = 80 + 4*tl
                A(f"v_mfma_f32_16x16x32_bf16 v[{D}:{D+3}], v[{24+4*ks}:{27+4*ks}], v[{b_}:{b_+3}], {'0' if ks==0 else f'v[{D}:{D+3}]'}")
        A(f"""v_mov_b32 v9, s18
        v_mov_b32 v11, s18
        v_mov_b32 v13, s18
        v_mov_b32 v15, s18
        s_mov_b64 exec, 0xffff
        s_nop 3
        v_mov_b32 v8, v80
        v_mov_b32 v10, v81
        v_mov_b32 v12, v84
        v_mov_b32 v14, v85
        buffer_store_dwordx2 v[8:9], v21, s[32:35], s46 offen sc1
        buffer_store_dwordx2 v[10:11], v21, s[32:35], s46 offen offset:2048 sc1
        buffer_store_dwordx2 v[12:13], v21, s[32:35], s47 offen sc1
        buffer_store_dwordx2 v[14:15], v21, s[32:35], s47 offen offset:2048 sc1
        s_mov_b64 exec, -1""")
        s.stamp(3)
        A("L_x12_end:")
        s.flush_stamps(4)
        A("s_endpgm")
        A("L_x3:")
        if s.prefetch:
            A(f"""s_getpc_b64 s[40:41]
            L_pc:
            s_sub_u32 s40, s40, L_pc-{NAME}_kernel
            s_subb_u32 s41, s41, 0
            v_lshlrev_b32 v6, 4, v1""")
            A("PREFETCH_PLACEHOLDER")
        A(f"""s_barrier
        s_cmp_ge_u32 s5, 7
        s_cbranch_scc1 L_x3_end
        s_lshl_b32 s40, s5, 3
        s_add_u32 s40, s40, s4
        s_and_b32 s41, s40, 1
        s_lshr_b32 s42, s40, 1
        v_and_b32 v5, 7, v1
        v_lshlrev_b32 v20, 2, v5
        s_lshl_b32 s60, s42, 5
        v_add_u32 v20, s60, v20
        global_load_dword v41, v20, s[26:27]
        s_mul_i32 s60, s41, 896
        v_add_u32 v20, s60, v20
        global_load_dword v40, v20, s[8:9]
        s_lshl_b32 s60, s40, 11
        s_add_u32 s44, s60, {FP}
        s_lshl_b32 s60, s40, 12
        s_add_u32 s46, s60, {SP}
        v_lshlrev_b32 v21, 4, v1
        v_cmp_gt_u32 s[48:49], 48, v1""")
        s.waitflag(F_Q, 8, sleep=8)
        s.stamp(1)
        l = s.lab("G"); d = s.lab("GD")
        A(f"""s_mov_b32 s61, 0
        {l}:
        buffer_load_dwordx4 v[24:27], v21, s[32:35], s44 offen sc1
        buffer_load_dwordx4 v[28:31], v21, s[32:35], s44 offen offset:1024 sc1
        s_add_u32 s61, s61, 1
        s_cmp_ge_u32 s61, {MAXPOLL}
        s_waitcnt vmcnt(0)
        s_cbranch_scc1 {d}
        v_xor_b32 v4, s18, v29
        v_xor_b32 v5, s18, v31
        v_or_b32 v4, v4, v5
        v_cndmask_b32 v4, 0, v4, s[48:49]
        v_xor_b32 v5, s18, v25
        v_or_b32 v4, v4, v5
        v_xor_b32 v5, s18, v27
        v_or_b32 v4, v4, v5
        v_cmp_ne_u32 vcc, 0, v4
        s_cbranch_vccnz {l}
        {d}:
        v_cndmask_b32 v28, 0, v28, s[48:49]
        v_cndmask_b32 v30, 0, v30, s[48:49]
        v_add_f32 v6, v24, v28
        v_add_f32 v7, v26, v30
        s_nop 1
        v_add_f32_dpp v6, v6, v6 row_ror:8 row_mask:0xf bank_mask:0xf
        v_add_f32_dpp v7, v7, v7 row_ror:8 row_mask:0xf bank_mask:0xf""")
        for w_ in (16, 32):
            s.red_swap("v_add_f32", 6, 5, w_); s.red_swap("v_add_f32", 7, 5, w_)
        A(f"""v_cvt_pk_bf16_f32 v6, v6, v7
        v_and_b32 v7, 0xffff0000, v6
        v_lshlrev_b32 v6, 16, v6
        v_lshlrev_b32 v8, 16, v41
        v_and_b32 v9, 0xffff0000, v41
        v_add_f32 v6, v6, v8
        v_add_f32 v7, v7, v9
        v_cvt_pk_bf16_f32 v6, v6, v7
        v_and_b32 v7, 0xffff0000, v6
        v_lshlrev_b32 v6, 16, v6
        v_mul_f32 v8, 0xBFB8AA3B, v6
        v_mul_f32 v9, 0xBFB8AA3B, v7
        v_exp_f32 v8, v8
        v_exp_f32 v9, v9
        s_nop 0
        v_add_f32 v8, 1.0, v8
        v_add_f32 v9, 1.0, v9
        v_rcp_f32 v8, v8
        v_rcp_f32 v9, v9
        s_nop 0
        v_mul_f32 v6, v6, v8
        v_mul_f32 v7, v7, v9
        v_cvt_pk_bf16_f32 v6, v6, v7
        v_and_b32 v43, 0xffff0000, v6
        v_lshlrev_b32 v42, 16, v6
        v_lshlrev_b32 v44, 16, v40
        v_and_b32 v45, 0xffff0000, v40""")
        s.stamp(2)
        A("s_barrier")
        s.stamp(3)
        s.gather_loop([f"buffer_load_dwordx4 v[{24+4*i}:{27+4*i}], v21, s[32:35], s46 offen offset:{1024*i} sc1" for i in range(4)],
                      [25, 27, 29, 31, 33, 35, 37, 39])
        s.stamp(4)
        A(f"""v_add_f32 v6, v24, v28
        v_add_f32 v7, v26, v30
        v_add_f32 v8, v32, v36
        v_add_f32 v9, v34, v38
        v_add_f32 v6, v6, v8
        v_add_f32 v7, v7, v9
        s_nop 1
        v_add_f32_dpp v6, v6, v6 row_ror:8 row_mask:0xf bank_mask:0xf
        v_add_f32_dpp v7, v7, v7 row_ror:8 row_mask:0xf bank_mask:0xf""")
        for w_ in (16, 32):
            A(f"""v_mov_b32 v8, v6
            v_mov_b32 v9, v7
            s_nop 0
            v_permlane{w_}_swap_b32 v8, v6
            v_permlane{w_}_swap_b32 v9, v7
            v_add_f32 v6, v6, v8
            v_add_f32 v7, v7, v9""")
        A(f"""v_cvt_pk_bf16_f32 v6, v6, v7
        v_and_b32 v7, 0xffff0000, v6
        v_lshlrev_b32 v6, 16, v6
        v_mul_f32 v6, v6, v42
        v_mul_f32 v7, v7, v43
        v_cvt_pk_bf16_f32 v6, v6, v7
        v_and_b32 v7, 0xffff0000, v6
        v_lshlrev_b32 v6, 16, v6
        v_add_f32 v6, v6, v44
        v_add_f32 v7, v7, v45
        v_cvt_pk_bf16_f32 v6, v6, v7
        s_mov_b64 exec, 0xff
        global_store_dword v20, v6, s[28:29]
        s_cmp_lg_u32 s40, 0
        s_cbranch_scc1 L_x3_noep
        s_mov_b64 exec, 1
        v_mov_b32 v8, s18
        v_mov_b32 v9, {EPOCH}
        global_store_dword v9, v8, s[30:31]
        L_x3_noep:
        s_mov_b64 exec, -1""")
        s.stamp(5)
        A("L_x3_end:")
        s.flush_stamps(6)
        A("L_exit:\ns_endpgm\nL_codeend:")

    def build(s):
        s.prologue(); s.loader(); s.common_cx(); s.cwave(); s.xwave()
        body = "\n".join(s.L)
        return body

HEAD = open("cdna_kernels/" + NAME + ".s.ref").read().split("; Override launch")[0] if False else None

def emit(path, **kw):
    g = G(**kw)
    body = g.build()
    npf = kw.get("npf", 8)
    pf = "\n".join(f"  global_load_dwordx4 v[8:11], v6, s[40:41] offset:{(i%4)*1024}" + ("\n  s_add_u32 s40, s40, 4096\n  s_addc_u32 s41, s41, 0" if i%4==3 else "") for i in range(PF_KB))
    body = body.replace("  PREFETCH_PLACEHOLDER", pf)
    hdr = f"""; fused decode kernel: LN -> (q proj, FFN) -> split-K GQA attention -> wo proj -> gate
; @launch grid=(256,1,1) block=(1024,1,1) lds={LDS_SIZE}
.amdgcn_target "amdgcn-amd-amdhsa--gfx950"
.text
.globl {NAME}_kernel
.p2align 8
.type {NAME}_kernel,@function
{NAME}_kernel:
"""
    ftr = f"""
.p2align 10
.fill 256, 4, 0xBF800000
.section .rodata,"a"
.p2align 6
.amdhsa_kernel {NAME}_kernel
  .amdhsa_next_free_vgpr 128
  .amdhsa_next_free_sgpr 102
  .amdhsa_accum_offset 128
  .amdhsa_group_segment_fixed_size 0
  .amdhsa_kernarg_size 104
  .amdhsa_user_sgpr_count 2
  .amdhsa_user_sgpr_kernarg_segment_ptr 1
  .amdhsa_system_sgpr_workgroup_id_x 1
  .amdhsa_float_denorm_mode_32 3
.end_amdhsa_kernel
"""
    open(path, "w").write(hdr + body + ftr)

PF_KB = 10
if __name__ == "__main__":
    emit("cdna_kernels/" + NAME + ".s")
    emit("k_st.s", stamps=True)
    emit("k.s")
```
